```python
import torch

def _softmax(x, axis=-1):
    return torch.softmax(x, dim=axis)
def _gelu(x):
    return torch.nn.functional.gelu(x, approximate="tanh")
def _silu(x):
    return torch.nn.functional.silu(x)
def _sigmoid(x):
    return torch.sigmoid(x)
def _layernorm(x, axis=-1, eps=1e-5):
    m = x.mean(dim=axis, keepdim=True)
    v = x.var(dim=axis, keepdim=True, unbiased=False)
    return (x - m) / torch.sqrt(v + eps)
def _scatter_add(tgt, idx, src, axis=0):
    return tgt.clone().index_add_(axis, idx, src)
def _segment_sum(src, seg, n):
    out = torch.zeros((n,) + src.shape[1:], dtype=src.dtype)
    return out.index_add_(0, seg, src)
def _pad(x, pw):
    flat = tuple(v for pair in reversed(pw) for v in pair)
    return torch.nn.functional.pad(x, flat)

kernel_name = 'interleave_layers__linear_kernel_hedgehog__glu_gated_geglu__prompt'

def setup_inputs():

    _w = (lambda a: (lambda t: t.to(torch.bfloat16) if t.is_floating_point() else t)(torch.as_tensor(a)))
    def _A_setup():
        B, S, D, H = 1, 2048, 512, 32
        Dh = D // H
        return {
            "x": _w((lambda *s: torch.randn(*s, dtype=torch.bfloat16) * 0.05)(B, S, D)),
            "wqkv": _w((lambda *s: torch.randn(*s, dtype=torch.bfloat16) * 0.4)(D, 3 * D)),
            "w_phi": _w((lambda *s: torch.randn(*s, dtype=torch.bfloat16) * 0.4)(H, Dh, Dh) * (Dh ** -0.5)),
            "wo": _w((lambda *s: torch.randn(*s, dtype=torch.bfloat16) * 0.05)(D, D)),
        }
    _A_in = _A_setup()

    def _B_setup():
        B, S, Dm, Df = 1, 2048, 512, 1792
        return {
            "x": _w((lambda *s: torch.randn(*s, dtype=torch.bfloat16) * 0.05)(B, S, Dm)),
            "w_gate": _w((lambda *s: torch.randn(*s, dtype=torch.bfloat16) * 1.6)(Dm, Df) * (Dm ** -0.5)),
            "w_up": _w((lambda *s: torch.randn(*s, dtype=torch.bfloat16) * 1.6)(Dm, Df) * (Dm ** -0.5)),
            "w_down": _w((lambda *s: torch.randn(*s, dtype=torch.bfloat16) * 1.6)(Df, Dm) * (Df ** -0.5)),
        }
    _B_in = _B_setup()

    return {
        "A_x": _A_in["x"],
        "A_wqkv": _A_in["wqkv"],
        "A_w_phi": _A_in["w_phi"],
        "A_wo": _A_in["wo"],
        "B_x": _B_in["x"],
        "B_w_gate": _B_in["w_gate"],
        "B_w_up": _B_in["w_up"],
        "B_w_down": _B_in["w_down"],
    }

def reference(A_x, A_wqkv, A_w_phi, A_wo, B_x, B_w_gate, B_w_up, B_w_down):
    def _A_ref(x, wqkv, w_phi, wo):
        B, S, D = x.shape
        H = 32; Dh = D // H
        qkv = (lambda x, *d: x.permute(*d))((x @ wqkv).reshape(B, S, 3, H, Dh), 2, 0, 3, 1, 4)
        q, k, v = qkv[0], qkv[1], qkv[2]
        pq = torch.einsum("bhsd,hdf->bhsf", q, w_phi)
        pk = torch.einsum("bhsd,hdf->bhsf", k, w_phi)
        phi_q = torch.concatenate([_softmax(pq, axis=-1), _softmax(-pq, axis=-1)], axis=-1)
        phi_k = torch.concatenate([_softmax(pk, axis=-1), _softmax(-pk, axis=-1)], axis=-1)
        kv = torch.einsum("bhsf,bhsd->bhfd", phi_k, v)
        z  = torch.einsum("bhsf->bhf", phi_k)
        num = torch.einsum("bhqf,bhfd->bhqd", phi_q, kv)
        den = torch.einsum("bhqf,bhf->bhq", phi_q, z)[..., None] + 1e-6
        o = num / den
        return (lambda x, *d: x.permute(*d))(o, 0, 2, 1, 3).reshape(B, S, D) @ wo

    def _B_ref(x, w_gate, w_up, w_down):
        g = torch.einsum("bsd,df->bsf", x, w_gate)
        u = torch.einsum("bsd,df->bsf", x, w_up)
        h = _gelu(g) * u
        return torch.einsum("bsf,fd->bsd", h, w_down)

    x = A_x
    x = x + _A_ref(_layernorm(x, axis=-1), A_wqkv, A_w_phi, A_wo)
    x = x + _B_ref(_layernorm(x, axis=-1), B_w_gate, B_w_up, B_w_down)
    x = x + _A_ref(_layernorm(x, axis=-1), A_wqkv, A_w_phi, A_wo)
    x = x + _B_ref(_layernorm(x, axis=-1), B_w_gate, B_w_up, B_w_down)
    return x
```

```python
import re

TRANS = ("v_exp_f32", "v_log_f32", "v_rcp_f32", "v_rsq_f32", "v_sqrt_f32", "v_sin_f32", "v_cos_f32")
REG_RE = re.compile(r"^(-|abs\()?([vas])(?:(\d+)|\[(\d+):(\d+)\])\)?$")


def regs_of(op):
    op = op.strip()
    if op == "vcc":
        return {("s", "vcc")}
    if op == "exec":
        return {("s", "exec")}
    if op == "m0":
        return {("s", "m0")}
    m = REG_RE.match(op)
    if not m:
        return set()
    k = m.group(2)
    if m.group(3) is not None:
        return {(k, int(m.group(3)))}
    return {(k, i) for i in range(int(m.group(4)), int(m.group(5)) + 1)}


class Ins:
    __slots__ = ("text", "mn", "ops", "rd", "wr", "kind", "srcc", "states", "target", "wide_store")

    def __init__(self, text):
        self.text = text
        self.rd, self.wr, self.srcc = set(), set(), set()
        self.states, self.target, self.wide_store = 1, None, set()
        t = text.split(";")[0].strip()
        if t.endswith(":"):
            self.mn, self.ops, self.kind, self.states = t[:-1], [], "label", 0
            return
        if t.startswith("."):
            self.mn, self.ops, self.kind, self.states = t, [], "dir", 0
            return
        parts = t.split(None, 1)
        mn = parts[0]
        for suf in ("_e32", "_e64"):
            if mn.endswith(suf):
                mn = mn[:-4]
        self.mn = mn
        rest = parts[1] if len(parts) > 1 else ""
        ops = [o.strip() for o in rest.split(",")] if rest else []
        flags = ""
        if ops:
            last = ops[-1].split()
            keep = []
            for i, o in enumerate(ops):
                sp = o.split()
                keep.append(sp[0] if sp else "")
                flags += " " + " ".join(sp[1:])
            ops = keep
        self.ops = ops
        R = [regs_of(o) for o in ops]
        allr = lambda lst: set().union(*lst) if lst else set()
        if mn.startswith("v_mfma"):
            self.kind = "mfma"
            self.wr, self.rd, self.srcc = R[0], R[1] | R[2] | R[3], R[3]
        elif mn.startswith("ds_read"):
            self.kind = "ds"
            self.wr, self.rd = R[0], allr(R[1:])
        elif mn.startswith("ds_"):
            self.kind = "ds"
            self.rd = allr(R)
        elif mn.startswith("buffer_load") or mn.startswith("global_load"):
            self.kind = "vm"
            if " lds" in flags + " ":
                self.rd = allr(R) | {("s", "m0")}
            else:
                self.wr, self.rd = R[0], allr(R[1:])
                if "d16" in mn:
                    self.rd |= R[0]
        elif mn.startswith("buffer_") or mn.startswith("global_"):
            self.kind = "vm"
            self.rd = allr(R)
            if mn.endswith("x4") or mn.endswith("x3"):
                self.wide_store = R[0]
        elif mn.startswith("v_"):
            self.kind = "valu"
            self.wr, self.rd = R[0], allr(R[1:])
            if mn.startswith("v_permlane"):
                self.wr = R[0] | R[1]
                self.rd = R[0] | R[1]
            if mn.startswith("v_fmac") or mn.startswith("v_dot2c") or mn.startswith("v_writelane"):
                self.rd |= R[0]
            if mn.startswith("v_cmpx"):
                self.wr |= {("s", "exec")}
        elif mn == "s_nop":
            self.kind, self.states = "nop", int(ops[0], 0) + 1
        elif mn in ("s_branch",) or mn.startswith("s_cbranch"):
            self.kind, self.target = "branch", ops[0]
        elif mn in ("s_waitcnt", "s_barrier", "s_endpgm", "s_setprio", "s_sleep"):
            self.kind = "misc"
        elif mn.startswith("s_load") or mn.startswith("s_memtime") or mn.startswith("s_memrealtime"):
            self.kind = "smem"
            self.wr, self.rd = R[0], allr(R[1:])
        elif mn.startswith("s_cmp") or mn.startswith("s_bitcmp"):
            self.kind = "salu"
            self.rd = allr(R)
        elif mn.startswith("s_"):
            self.kind = "salu"
            self.wr, self.rd = R[0], allr(R[1:])
            if "saveexec" in mn:
                self.wr |= {("s", "exec")}
        else:
            raise ValueError("unparsed instruction: " + text)


def need_states(p, c):
    n = 0
    vw = {r for r in p.wr if r[0] in "va"}
    sw = {r for r in p.wr if r[0] == "s"}
    if p.kind == "mfma":
        passes = 8 if "32x32" in p.mn else 4
        big = {8: 12, 4: 8}[passes]
        if c.kind == "mfma":
            if vw & (c.rd - c.srcc) or (vw & c.srcc and vw & (regs_of(c.ops[1]) | regs_of(c.ops[2]))):
                n = max(n, big)
            if vw & c.srcc and not (vw == c.srcc and p.mn == c.mn):
                n = max(n, big - 2)
            if vw & c.wr and not (vw & c.srcc):
                n = max(n, big - 2)
        elif c.kind in ("valu", "vm", "ds"):
            if vw & (c.rd | c.wr):
                n = max(n, big)
        if c.kind in ("valu", "ds", "vm") and p.srcc & c.wr:
            n = max(n, {8: 7, 4: 3}[passes])
    if p.kind == "valu":
        if c.kind == "mfma" and vw & c.rd:
            n = max(n, 3 if p.mn.startswith("v_dot") else 2)
        if c.kind == "mfma" and ("s", "exec") in sw:
            n = max(n, 4)
        if p.mn in TRANS and c.kind == "valu" and c.mn not in TRANS and vw & c.rd:
            n = max(n, 1)
        if p.mn in TRANS and c.kind in ("vm", "ds") and vw & c.rd:
            n = max(n, 1)
        if c.kind == "valu" and c.mn.startswith("v_permlane") and vw & c.rd:
            n = max(n, 2)
        if c.kind == "valu" and c.mn.startswith(("v_readfirstlane", "v_readlane")) and vw & c.rd:
            n = max(n, 1)
        if c.kind == "valu" and "dpp" in c.text and vw & c.rd:
            n = max(n, 2)
        if sw and c.kind == "vm" and sw & c.rd:
            n = max(n, 5)
        if sw and c.kind == "valu" and sw & c.rd:
            n = max(n, 2)
        if sw and c.kind in ("salu", "smem") and sw & c.rd:
            n = max(n, 1)
        if ("s", "vcc") in sw and c.kind == "branch" and "vcc" in c.mn:
            n = max(n, 1)
        if p.mn.startswith("v_dot") and c.kind in ("valu", "vm", "ds") and vw & (c.rd | c.wr):
            same_acc = c.mn == p.mn and not (vw & (regs_of(c.ops[1]) | regs_of(c.ops[2])))
            if not same_acc:
                n = max(n, 3)
        if "op_sel" in p.text and not p.mn.startswith("v_pk") and c.kind == "valu" and vw & (c.rd | c.wr):
            n = max(n, 1)
    if p.kind == "salu" and ("s", "m0") in sw and c.kind in ("vm", "ds") and ("s", "m0") in c.rd:
        n = max(n, 1)
    if p.wide_store and c.kind in ("valu", "mfma", "ds", "vm") and p.wide_store & c.wr:
        n = max(n, 2)
    return n


class Asm:
    def __init__(self):
        self.ins = []
        self.vm = []
        self.lg = []
        self.count_ops = True
        self.nlabel = 0

    def __call__(self, text, tag=None):
        for line in text.split("\n"):
            line = line.strip()
            if not line or line.startswith(";"):
                continue
            i = Ins(line)
            self.ins.append(i)
            if self.count_ops:
                if i.kind == "vm":
                    self.vm.append(tag)
                    assert len(self.vm) <= 63, "more than 63 vector-memory ops outstanding: " + line
                elif i.kind == "ds":
                    self.lg.append(tag)
            if i.mn == "s_waitcnt":
                m = re.search(r"vmcnt\((\d+)\)", line)
                if m and self.count_ops:
                    n = int(m.group(1))
                    self.vm = self.vm[len(self.vm) - n:] if n < len(self.vm) else self.vm
                m = re.search(r"lgkmcnt\((\d+)\)", line)
                if m and self.count_ops:
                    n = int(m.group(1))
                    self.lg = self.lg[len(self.lg) - n:] if n < len(self.lg) else self.lg

    def label(self, base="L"):
        self.nlabel += 1
        return f"{base}_{self.nlabel}"

    @staticmethod
    def _younger(lst, tags):
        if not isinstance(tags, (list, set)):
            tags = [tags]
        idx = [i for i, t in enumerate(lst) if t in tags]
        return None if not idx else len(lst) - 1 - max(idx)

    def wait(self, vm=None, lg=None):
        parts = []
        if vm is not None:
            n = self._younger(self.vm, vm)
            if n is not None:
                parts.append(f"vmcnt({n})")
        if lg is not None:
            n = self._younger(self.lg, lg)
            if n is not None:
                parts.append(f"lgkmcnt({min(n, 15)})")
        if parts:
            self("s_waitcnt " + " ".join(parts))

    def fix_hazards(self):
        out = []
        WINDOW = 20
        for c in self.ins:
            if c.kind not in ("label", "dir"):
                dist, need = 0, 0
                for p in reversed(out):
                    if p.mn in ("s_branch", "s_endpgm"):
                        break
                    if dist >= WINDOW:
                        break
                    n = need_states(p, c) if p.states else 0
                    need = max(need, n - dist)
                    dist += p.states
                while need > 0:
                    k = min(need, 16)
                    out.append(Ins(f"s_nop {k - 1}"))
                    need -= k
            out.append(c)
        self.ins = out
        pos = {i.mn: k for k, i in enumerate(out) if i.kind == "label"}
        problems = []
        for k, b in enumerate(out):
            if b.kind != "branch":
                continue
            before = []
            d = 0
            for p in reversed(out[:k + 1]):
                if p is not b and p.mn in ("s_branch", "s_endpgm"):
                    break
                before.append(p)
                d += p.states
                if d >= WINDOW:
                    break
            ahead = 0
            for c in out[pos[b.target]:]:
                if ahead >= WINDOW:
                    break
                if c.states:
                    dist = ahead
                    for p in before:
                        if p.states and need_states(p, c) > dist:
                            problems.append(f"branch edge {b.text}: {p.text} -> {c.text}")
                        dist += p.states
                ahead += c.states
                if c.mn in ("s_branch", "s_endpgm"):
                    break
        assert not problems, "\n".join(problems)

    def text(self):
        return "\n".join((i.text if i.kind in ("label", "dir") else "    " + i.text) for i in self.ins)


class Regs:
    def __init__(self, kind, start, limit):
        self.kind, self.next, self.limit = kind, start, limit
        self.high = start

    def alloc(self, n=1, align=1):
        b = (self.next + align - 1) // align * align
        self.next = b + n
        assert self.next <= self.limit, f"out of {self.kind} registers"
        self.high = max(self.high, self.next)
        return R(self.kind, b, n)


class R:
    def __init__(self, kind, base, n):
        self.kind, self.base, self.n = kind, base, n

    def __getitem__(self, i):
        if isinstance(i, slice):
            a = i.start or 0
            b = self.n if i.stop is None else i.stop
            assert 0 <= a < b <= self.n, (a, b, self.n)
            return R(self.kind, self.base + a, b - a)
        assert 0 <= i < self.n, (i, self.n)
        return R(self.kind, self.base + i, 1)

    def __str__(self):
        return f"{self.kind}{self.base}" if self.n == 1 else f"{self.kind}[{self.base}:{self.base + self.n - 1}]"

    __repr__ = __str__

    def __format__(self, spec):
        return str(self)
```

```python
import sys
from asmlib import Asm, Regs, R

NAME = "interleave_layers__linear_kernel_hedgehog__glu_gated_geglu__prompt"
MB = 1 << 20
PASS = 16 * MB
XA, XB, OO, HH = 0, 2 * MB, 4 * MB, 6 * MB
STA, STB, KV, FLG = 13 * MB, 13 * MB + 256 * 1024, 13 * MB + 512 * 1024, 14 * MB + 512 * 1024
F_XA, F_O, F_XB, F_H, F_KV = FLG, FLG + 4096, FLG + 8192, FLG + 12288, FLG + 16384
STATIC = 48 * MB
EPOCH, F_PREP, CORRP, WGU, STAMPS = 0, 4096, 65536, MB, 8 * MB
KVP = 640
SLOT = 32768
S0, S1, S2, S3, S4 = (i * SLOT for i in range(5))
EX_PHI, EX_V, EX_ONES, EX_KVA = S3, S3 + 16384, S3 + 24576, S3 + 26624
LOG2E = 0x3FB8AA3B
MFMA = "v_mfma_f32_32x32x16_bf16"


def f32(x):
    import struct
    return "0x%08x" % struct.unpack("<I", struct.pack("<f", x))[0]


class Gen:
    def __init__(self, stamps=False, local=True, stop=None):
        self.a = Asm()
        self.stamps_on, self.local, self.stop = stamps, local, stop
        self.nstamp = 0
        S = self.S = Regs("s", 4, 100)
        V = self.V = Regs("v", 1, 256)
        A = self.A = Regs("a", 0, 256)
        srd = lambda: S.alloc(4, 4)
        (self.rWS, self.rST, self.rAX, self.rQKV, self.rPHI, self.rWO, self.rWG, self.rWU, self.rWD,
         self.rOUT) = (srd() for _ in range(10))
        self.sTok = S.alloc(2, 2)
        self.sT2 = S.alloc(2, 2)
        self.sEx = S.alloc(2, 2)
        for n in ("sC sR sW sPass sMode sSpin sXcc sRT1 sRT2 sCT sW8K sTmp sTmp2 sOff sDma sQb sWOb sWDb sWGb "
                  "sFl sXo sSo sFo sOnes").split():
            setattr(self, n, S.alloc())
        self.sStamp = S.alloc(2, 2) if stamps else None
        self.vStamp = V.alloc() if stamps else None
        for n in ("vL16 vL4 vFlag vRes vTrQ0 vTrQ1 vTrQ2 vL16b vL16c vExW0 vExW1 vExV0 vExV1 vKvA0 vKvA1 vKvB0 vKvB1 "
                  "vKvStep vKvOff vRedW vRedR vRedW2 vRedR2 vKvaW").split():
            setattr(self, n, V.alloc())
        self.vKeep = V.alloc(3)
        self.vSend = V.alloc(3)
        self.vDQ = V.alloc(4)
        self.vDO = V.alloc(4)
        self.vDD = V.alloc(2)
        self.vTok = V.alloc(2, 2)
        self.vF = V.alloc(2, 2)
        self.vSc = V.alloc(8, 2)
        self.vNM = V.alloc(4, 4)
        self.vResid = V.alloc(16, 4)
        self.vPk = V.alloc(16, 4)
        self.vW = V.alloc(32, 4)
        self.vAcc = V.alloc(64, 4)
        self.vT = V.alloc(48, 4)
        self.aX = A.alloc(160, 4)
        self.aCorrQ = A.alloc(12, 4)
        self.aCorrG = A.alloc(28, 4)
        self.aPhi = A.alloc(8, 4)
        self.aSel = A.alloc(4, 4)

    def stamp(self, name):
        if not self.stamps_on:
            return
        a = self.a
        a(f"s_memrealtime {self.sStamp}\ns_waitcnt lgkmcnt(0)")
        a(f"s_lshl_b32 {self.sTmp}, {self.sPass}, 5\ns_add_u32 m0, {self.sTmp}, {self.nstamp}")
        a(f"v_writelane_b32 {self.vStamp}, {self.sStamp[0]}, m0")
        self.stamp_names = getattr(self, "stamp_names", []) + [name]
        self.nstamp += 1
        assert self.nstamp <= 32

    def lds_base(self, regs, addr):
        return regs[addr >> 16], addr & 0xFFFF

    def dma_group(self, srd, voffs, lds, sbase, soff, tag, sc1=False):
        fl = " sc1" if sc1 else ""
        out = [(f"s_add_u32 m0, {self.sW8K}, {lds}", None), (f"s_add_u32 {self.sDma}, {sbase}, {soff}", None)]
        for j in range(4):
            off = f" offset:{1024 * j}" if j else ""
            out.append((f"buffer_load_dwordx4 {voffs[j]}, {srd}, {self.sDma} offen{off}{fl} lds", tag))
        return out

    def dma_qkv(self, which, slot):
        col = {"q": 0, "k": 1024, "v": 2048}[which]
        v = [self.vDQ[j] for j in range(4)]
        return sum((self.dma_group(self.rQKV, v, slot + 4096 * g, self.sQb, col + g * 4 * 49152, "W" + which)
                    for g in range(2)), [])

    def dma_wo(self, j, slot):
        v = [self.vDO[i] for i in range(4)]
        return sum((self.dma_group(self.rWO, v, slot + 4096 * g, self.sWOb, (8 * j + g) * 16384, f"wo{j}")
                    for g in range(2)), [])

    def dma_wd(self, t, slot):
        v = [self.vDO[0], self.vDO[1], self.vDD[0], self.vDD[1]]
        return sum((self.dma_group(self.rWD, v, slot + 4096 * g, self.sWDb, (7 * g + t) * 16384, f"d{t}")
                    for g in range(2)), [])

    def dma_gu(self, t, slot):
        v = [self.vL16] * 4
        return sum((self.dma_group(self.rST, v, slot + 4096 * g, self.sWGb, t * 32768 + g * 4096, f"t{t}", sc1=True)
                    for g in range(2)), [])

    def emit(self, lst):
        for text, tag in lst:
            self.a(text, tag)

    def hstore(self, stores, tag, device=False):
        a = self.a
        if device or not self.local:
            for s in stores:
                a(s + " sc1", tag)
            return
        l1, l2 = a.label("L_dev"), a.label("L_st")
        a(f"s_cmp_eq_u32 {self.sMode}, 0\ns_cbranch_scc1 {l1}")
        for s in stores:
            a(s, tag)
        a(f"s_branch {l2}\n{l1}:")
        a.count_ops = False
        for s in stores:
            a(s + " sc1")
        a.count_ops = True
        a(f"{l2}:")

    def signal(self, srd, soff, device=False, data=None):
        a = self.a
        data = data or self.vTok
        keep, a.count_ops = a.count_ops, False
        a(f"s_mov_b64 exec, 1")
        dev = f"buffer_atomic_swap_x2 {data}, off, {srd}, {soff} sc1"
        if device or not self.local:
            a(dev)
        else:
            l1, l2 = a.label("L_dev"), a.label("L_sg")
            a(f"s_cmp_eq_u32 {self.sMode}, 0\ns_cbranch_scc1 {l1}")
            a(f"buffer_store_dwordx2 {data}, off, {srd}, {soff}")
            a(f"s_branch {l2}\n{l1}:\n{dev}\n{l2}:")
        a(f"s_mov_b64 exec, -1")
        a.count_ops = keep

    def poll(self, srd, voff, soff, first=False):
        a = self.a
        keep, a.count_ops = a.count_ops, False
        lp, dn = a.label("L_poll"), a.label("L_pdone")
        a(f"{lp}:")
        a(f"buffer_load_dwordx2 {self.vF}, {voff}, {srd}, {soff} offen sc1\ns_waitcnt vmcnt(0)")
        if first:
            t = self.vT
            a(f"v_mov_b32 {t[0]}, {self.vF[0]}\nv_and_b32 {t[1]}, -16, {self.vF[1]}")
            a(f"v_cmp_ne_u64 vcc, {self.sTok}, {t[0:2]}")
        else:
            a(f"v_cmp_ne_u64 vcc, {self.sTok}, {self.vF}")
        a(f"s_cbranch_vccz {dn}")
        a(f"s_sub_u32 {self.sSpin}, {self.sSpin}, 1\ns_cbranch_scc0 {lp}\ns_endpgm")
        a(f"{dn}:")
        a.count_ops = keep
        if keep:
            a.vm = []

    def wave0(self, body):
        a = self.a
        l = a.label("L_w0")
        a(f"s_cmp_lg_u32 {self.sW}, 0\ns_cbranch_scc1 {l}")
        keep, a.count_ops = a.count_ops, False
        body()
        a.count_ops = keep
        a(f"{l}:")

    def cluster_sync(self, flag_off, store_tags, landed=(), first=False):
        a = self.a
        a.wait(vm=list(store_tags))
        a("s_barrier")

        def body():
            a(f"s_add_u32 {self.sOff}, {self.sFl}, {flag_off}")
            a(f"s_lshl_b32 {self.sTmp}, {self.sR}, 3\ns_add_u32 {self.sTmp}, {self.sTmp}, {self.sOff}")
            self.signal(self.rWS, self.sTmp)
            self.poll(self.rWS, self.vFlag, self.sOff)
        self.wave0(body)
        a.wait(vm=list(landed))
        a("s_barrier")

    def load_frags(self, sbase, off, n, stride, dst, tag, start=0):
        out = []
        cur = None
        for i in range(start, start + n):
            o = off + i * stride
            if cur is None or not (0 <= o - cur <= 4095):
                cur = o
                out.append((f"s_add_u32 {self.sOff}, {sbase}, {cur}", None))
            imm = f" offset:{o - cur}" if o != cur else ""
            out.append((f"buffer_load_dwordx4 {dst(i)}, {self.vL16}, {self.rWS}, {self.sOff} offen{imm} sc1", (tag, i)))
        return out

    def load_stats(self, off):
        t = self.vT
        out = [(f"s_lshl_b32 {self.sOff}, {self.sRT1}, 12", None), (f"s_add_u32 {self.sOff}, {self.sOff}, {off}", None)]
        for i in range(16):
            imm = f" offset:{256 * i}" if i else ""
            out.append((f"buffer_load_dword {t[i]}, {self.vL4}, {self.rWS}, {self.sOff} offen{imm} sc1", "stats"))
        return out

    def stats_math(self, gelu):
        t, sc = self.vT, self.vSc
        o = [("WAITVM", "stats")]
        n = 16
        while n > 1:
            n //= 2
            o += [(f"v_add_f32 {t[i]}, {t[i]}, {t[i + n]}", None) for i in range(n)]
        o += [(f"v_mul_f32 {t[0]}, {f32(1 / 512)}, {t[0]}", None), (f"v_mov_b32 {t[1]}, {t[0]}", None)]
        o += [(f"v_permlane32_swap_b32 {t[0]}, {t[1]}", None)]
        o += [(f"v_fma_f32 {t[1]}, -{t[0]}, {t[0]}, {t[1]}", None), (f"v_max_f32 {t[1]}, 0, {t[1]}", None),
              (f"v_add_f32 {sc[6]}, {f32(1e-5)}, {t[1]}", None), (f"v_rsq_f32 {sc[0]}, {sc[6]}", None),
              (f"v_cvt_pk_bf16_f32 {self.vNM[0]}, -{t[0]}, -{t[0]}", None)]
        o += [(f"v_mov_b32 {self.vNM[i]}, {self.vNM[0]}", None) for i in (1, 2, 3)]
        if gelu:
            k0 = -2 * 0.7978845608028654 * 1.4426950408889634
            o += [(f"v_mul_f32 {sc[2]}, {f32(k0)}, {sc[0]}", None), (f"v_mul_f32 {t[2]}, {sc[0]}, {sc[0]}", None),
                  (f"v_mul_f32 {t[2]}, {f32(0.044715)}, {t[2]}", None), (f"v_mul_f32 {sc[4]}, {t[2]}, {sc[2]}", None)]
        else:
            o += [(f"v_mul_f32 {sc[2]}, {hex(LOG2E)}, {sc[0]}", None)]
        return o

    @staticmethod
    def cost(text):
        return 2 if text.startswith(("v_exp", "v_rcp", "v_rsq")) else 1

    def fill(self, q, budget):
        a = self.a
        while q and budget > 0:
            text, tag = q[0]
            if text == "STOP":
                q.pop(0)
                return
            q.pop(0)
            if text == "WAITVM":
                a.wait(vm=tag)
            elif callable(text):
                text()
            else:
                a(text, tag)
            budget -= 1 if callable(text) else self.cost(text)

    def flush(self, q):
        while q:
            self.fill(q, 1 << 20)

    def tail(self, acc, final):
        a, pk, t = self.a, self.vPk, self.vT
        for i in range(8):
            if acc is not None:
                a(f"v_cvt_pk_bf16_f32 {pk[i]}, {acc[2 * i]}, {acc[2 * i + 1]}")
        if final:
            lf = a.label("L_final")
            a(f"s_cmp_lg_u32 {self.sPass}, 0\ns_cbranch_scc1 L_final")
        dev = acc is None
        self.hstore([f"buffer_store_dwordx4 {pk[0:4]}, {self.vL16}, {self.rWS}, {self.sXo} offen",
                     f"buffer_store_dwordx4 {pk[4:8]}, {self.vL16}, {self.rWS}, {self.sXo} offen offset:1024"], "pub", dev)
        a(f"v_dot2_f32_bf16 {t[0]}, {pk[0]}, {self.sOnes}, 0\nv_dot2_f32_bf16 {t[1]}, {pk[0]}, {pk[0]}, 0")
        for i in range(1, 8):
            a(f"v_dot2_f32_bf16 {t[0]}, {pk[i]}, {self.sOnes}, {t[0]}\nv_dot2_f32_bf16 {t[1]}, {pk[i]}, {pk[i]}, {t[1]}")
        a(f"v_permlane32_swap_b32 {t[0]}, {t[1]}\nv_add_f32 {t[0]}, {t[0]}, {t[1]}")
        self.hstore([f"buffer_store_dword {t[0]}, {self.vL4}, {self.rWS}, {self.sSo} offen"], "pub", dev)
        for i in range(8):
            a(f"v_lshlrev_b32 {self.vResid[2 * i]}, 16, {pk[i]}\nv_and_b32 {self.vResid[2 * i + 1]}, 0xffff0000, {pk[i]}")

    def set_pub(self, xoff, soff):
        a = self.a
        a(f"s_lshl_b32 {self.sXo}, {self.sRT2}, 15\ns_lshl_b32 {self.sTmp}, {self.sCT}, 11")
        a(f"s_add_u32 {self.sXo}, {self.sXo}, {self.sTmp}\ns_lshr_b32 {self.sSo}, {self.sXo}, 3")
        a(f"s_add_u32 {self.sXo}, {self.sXo}, {xoff}\ns_add_u32 {self.sSo}, {self.sSo}, {soff}")

    def init(self):
        a, t = self.a, self.vT
        a("s_cmp_lt_u32 s2, 256\ns_cbranch_scc1 L_go\ns_endpgm\nL_go:")
        for r, slot in ((self.rWS, 10), (self.rAX, 0), (self.rQKV, 1), (self.rPHI, 2), (self.rWO, 3), (self.rWG, 5),
                        (self.rWU, 6), (self.rWD, 7), (self.rOUT, 8)):
            a(f"s_load_dwordx2 {r[0:2]}, s[0:1], {slot * 8}")
        a(f"s_getpc_b64 {self.sT2}\nL_pc:")
        a(f"v_lshlrev_b32 {t[0]}, 7, v0\nv_min_u32 {t[1]}, L_code_end-L_pc-4, {t[0]}")
        a(f"global_load_dword {t[40]}, {t[1]}, {self.sT2}", "code")
        a(f"v_add_u32 {t[0]}, 32768, {t[0]}\nv_min_u32 {t[1]}, L_code_end-L_pc-4, {t[0]}")
        a(f"global_load_dword {t[41]}, {t[1]}, {self.sT2}", "code")
        for r, n in ((self.rWS, 40 * MB), (self.rST, 16 * MB), (self.rAX, 2 * MB), (self.rQKV, 512 * 3072),
                     (self.rPHI, 16384), (self.rWO, 512 * 1024), (self.rWG, 512 * 3584), (self.rWU, 512 * 3584),
                     (self.rWD, 1792 * 1024), (self.rOUT, 2 * MB)):
            a(f"s_mov_b32 {r[2]}, {n}\ns_mov_b32 {r[3]}, 0x20000")
        lane, g, rho, gam, j1, kh, hh, tok = (t[i] for i in range(2, 10))
        a(f"v_lshrrev_b32 {t[0]}, 6, v0\nv_and_b32 {lane}, 63, v0\nv_readfirstlane_b32 {self.sW}, {t[0]}")
        a(f"s_and_b32 {self.sC}, s2, 7\ns_lshl_b32 {self.sC}, {self.sC}, 1\ns_lshr_b32 {self.sTmp}, s2, 7")
        a(f"s_add_u32 {self.sC}, {self.sC}, {self.sTmp}\ns_lshr_b32 {self.sR}, s2, 3\ns_and_b32 {self.sR}, {self.sR}, 15")
        a(f"s_lshl_b32 {self.sRT1}, {self.sC}, 2\ns_lshr_b32 {self.sTmp}, {self.sR}, 3\ns_lshl_b32 {self.sTmp}, {self.sTmp}, 1")
        a(f"s_add_u32 {self.sRT2}, {self.sRT1}, {self.sTmp}\ns_and_b32 {self.sTmp}, {self.sW}, 1")
        a(f"s_add_u32 {self.sRT2}, {self.sRT2}, {self.sTmp}\ns_add_u32 {self.sRT1}, {self.sRT1}, {self.sW}")
        a(f"s_and_b32 {self.sCT}, {self.sR}, 7\ns_lshl_b32 {self.sCT}, {self.sCT}, 1\ns_lshr_b32 {self.sTmp}, {self.sW}, 1")
        a(f"s_add_u32 {self.sCT}, {self.sCT}, {self.sTmp}")
        a(f"v_lshlrev_b32 {self.vL16}, 4, {lane}\nv_lshrrev_b32 {hh}, 5, {lane}\nv_and_b32 {tok}, 31, {lane}")
        a(f"v_lshlrev_b32 {self.vRes}, 10, {tok}\nv_lshl_add_u32 {self.vRes}, {hh}, 4, {self.vRes}")
        a(f"s_lshl_b32 {self.sOff}, {self.sRT2}, 15\ns_lshl_b32 {self.sTmp}, {self.sCT}, 6\ns_add_u32 {self.sFo}, {self.sOff}, {self.sTmp}")
        a(f"s_lshl_b32 {self.sW8K}, {self.sW}, 13")
        a("s_waitcnt lgkmcnt(0)")
        a(f"buffer_load_dwordx4 {self.vPk[0:4]}, {self.vRes}, {self.rAX}, {self.sFo} offen", "res")
        a(f"buffer_load_dwordx4 {self.vPk[4:8]}, {self.vRes}, {self.rAX}, {self.sFo} offen offset:32", "res")
        a(f"s_add_u32 {self.rST[0]}, {self.rWS[0]}, {STATIC}\ns_addc_u32 {self.rST[1]}, {self.rWS[1]}, 0")
        a(f"s_load_dwordx2 {self.sTok}, {self.rST[0:2]}, {EPOCH}")
        a(f"v_lshrrev_b32 {t[0]}, 3, {lane}\nv_and_b32 {t[1]}, 7, {lane}\nv_mul_u32_u24 {t[10]}, 3584, {t[0]}")
        a(f"v_lshl_add_u32 {t[10]}, {t[1]}, 4, {t[10]}\nv_add_u32 {t[11]}, {8 * 3584 - 1024}, {t[10]}")
        a(f"s_and_b32 {self.sTmp}, s2, 7\ns_lshl_b32 {self.sTmp}, {self.sTmp}, 2\ns_add_u32 {self.sTmp}, {self.sTmp}, {self.sW}")
        a(f"s_mul_i32 {self.sTmp}, {self.sTmp}, {16 * 3584}\ns_lshr_b32 {self.sTmp2}, s2, 3\ns_min_u32 {self.sTmp2}, {self.sTmp2}, 27")
        a(f"s_lshl_b32 {self.sTmp2}, {self.sTmp2}, 7\ns_add_u32 {self.sDma}, {self.sTmp}, {self.sTmp2}")
        a(f"s_lshl_b32 {self.sTmp}, {self.sW}, 11\ns_add_u32 m0, {self.sTmp}, {S4}")
        a(f"buffer_load_dwordx4 {t[10]}, {self.rWG}, {self.sDma} offen lds", "prep")
        a(f"buffer_load_dwordx4 {t[11]}, {self.rWG}, {self.sDma} offen offset:1024 lds", "prep")
        a(f"s_add_u32 m0, {self.sTmp}, {S4 + 8192}")
        a(f"buffer_load_dwordx4 {t[10]}, {self.rWU}, {self.sDma} offen lds", "prep")
        a(f"buffer_load_dwordx4 {t[11]}, {self.rWU}, {self.sDma} offen offset:1024 lds", "prep")
        a(f"s_lshl_b32 {self.sTmp}, {self.sW}, 10\ns_add_u32 m0, {self.sTmp}, {S3 + 4096}\ns_lshl_b32 {self.sDma}, {self.sR}, 10")
        a(f"buffer_load_dwordx4 {self.vL16}, {self.rPHI}, {self.sDma} offen lds", "phi")
        a(f"v_lshrrev_b32 {g}, 4, {lane}\nv_and_b32 {j1}, 1, {g}\nv_lshrrev_b32 {kh}, 1, {g}")
        a(f"v_bfe_u32 {rho}, {lane}, 2, 2\nv_and_b32 {gam}, 3, {lane}")
        g0, g1, q2, row = t[12], t[13], t[14], t[15]
        a(f"v_and_b32 {g0}, 1, {gam}\nv_lshrrev_b32 {g1}, 1, {gam}\nv_lshl_add_u32 {q2}, {g0}, 1, {g1}")
        a(f"v_lshl_add_u32 {row}, {kh}, 3, {rho}")
        a(f"v_lshl_add_u32 {t[0]}, {j1}, 2, {q2}\nv_lshlrev_b32 {t[0]}, 3, {t[0]}")
        a(f"v_lshl_add_u32 {self.vTrQ0}, {row}, 6, {t[0]}")
        a(f"v_add_u32 {self.vTrQ1}, 65536, {self.vTrQ0}\nv_add_u32 {self.vTrQ2}, 131072, {self.vTrQ0}")
        a(f"v_add_u32 {self.vL16b}, 65536, {self.vL16}\nv_add_u32 {self.vL16c}, 131072, {self.vL16}")
        a(f"v_lshlrev_b32 {self.vL4}, 2, {lane}\nv_and_b32 {self.vFlag}, 15, {lane}\nv_lshlrev_b32 {self.vFlag}, 3, {self.vFlag}")
        a(f"s_lshr_b32 {self.sTmp}, {self.sW}, 1\nv_lshrrev_b32 {t[1]}, 1, {rho}\nv_xor_b32 {t[1]}, {self.sTmp}, {t[1]}")
        a(f"v_lshl_add_u32 {t[0]}, {t[1]}, 6, {t[0]}\nv_lshl_add_u32 {t[0]}, {row}, 7, {t[0]}")
        a(f"s_lshl_b32 {self.sTmp}, {self.sTmp}, 11\nv_add_u32 {self.vKeep[0]}, {self.sTmp}, {t[0]}")
        a(f"v_xor_b32 {self.vSend[0]}, 64, {self.vKeep[0]}")
        for r in (self.vKeep, self.vSend):
            a(f"v_add_u32 {r[1]}, 65536, {r[0]}\nv_add_u32 {r[2]}, 131072, {r[0]}")
        a(f"v_lshrrev_b32 {t[0]}, 2, {lane}\nv_mul_u32_u24 {t[0]}, 3072, {t[0]}\nv_lshl_add_u32 {self.vDQ[0]}, {gam}, 4, {t[0]}")
        for j in (1, 2, 3):
            a(f"v_add_u32 {self.vDQ[j]}, {j * (49152 - 1024)}, {self.vDQ[0]}")
        a(f"v_lshrrev_b32 {t[0]}, 3, {lane}\nv_and_b32 {t[1]}, 7, {lane}\nv_lshlrev_b32 {t[16]}, 2, {j1}")
        a(f"v_xor_b32 {t[1]}, {t[1]}, {t[16]}\nv_lshlrev_b32 {t[1]}, 4, {t[1]}\nv_lshl_add_u32 {self.vDO[0]}, {t[0]}, 10, {t[1]}")
        a(f"v_add_u32 {self.vDO[1]}, {8192 - 1024}, {self.vDO[0]}")
        a(f"v_add_u32 {self.vDO[2]}, {256 * 1024 - 2048}, {self.vDO[0]}\nv_add_u32 {self.vDO[3]}, {256 * 1024 + 8192 - 3072}, {self.vDO[0]}")
        a(f"v_add_u32 {self.vDD[0]}, {896 * 1024 - 2048}, {self.vDO[0]}\nv_add_u32 {self.vDD[1]}, {896 * 1024 + 8192 - 3072}, {self.vDO[0]}")
        a(f"s_mul_i32 {self.sQb}, {self.sW}, {8 * 49152}\ns_lshl_b32 {self.sTmp}, {self.sR}, 6\ns_add_u32 {self.sQb}, {self.sQb}, {self.sTmp}")
        a(f"s_and_b32 {self.sTmp}, {self.sR}, 7\ns_lshl_b32 {self.sTmp}, {self.sTmp}, 7")
        a(f"s_lshl_b32 {self.sWOb}, {self.sW}, 15\ns_add_u32 {self.sWOb}, {self.sWOb}, {self.sTmp}")
        a(f"s_mul_i32 {self.sWDb}, {self.sW}, {14 * 16384}\ns_add_u32 {self.sWDb}, {self.sWDb}, {self.sTmp}")
        a(f"s_mul_i32 {self.sWGb}, {self.sR}, {7 * 32768}\ns_add_u32 {self.sWGb}, {self.sWGb}, {self.sW8K}")
        a(f"s_add_u32 {self.sWGb}, {self.sWGb}, {WGU}")
        self.emit(self.dma_qkv("k", S0))
        swz = t[17]
        a(f"v_bfe_u32 {swz}, {tok}, 1, 2\ns_lshl_b32 {self.sTmp}, {self.sW}, 11\ns_add_u32 {self.sTmp}, {self.sTmp}, {EX_PHI}")
        a(f"v_lshl_add_u32 {t[0]}, {tok}, 6, {self.sTmp}\nv_lshlrev_b32 {t[1]}, 1, {hh}\nv_xor_b32 {t[1]}, {t[1]}, {swz}")
        a(f"v_lshl_add_u32 {self.vExW0}, {t[1]}, 4, {t[0]}\nv_xor_b32 {self.vExW1}, 16, {self.vExW0}")
        a(f"v_xor_b32 {t[1]}, {hh}, {swz}\nv_lshl_add_u32 {self.vExV0}, {t[1]}, 4, {t[0]}\nv_xor_b32 {self.vExV1}, 32, {self.vExV0}")
        rs = t[18]
        a(f"v_lshrrev_b32 {rs}, 1, {rho}\ns_and_b32 {self.sTmp2}, {self.sW}, 1")
        a(f"v_lshl_add_u32 {t[0]}, {g0}, 1, {j1}\nv_xor_b32 {t[0]}, {t[0]}, {rs}\nv_lshlrev_b32 {t[0]}, 4, {t[0]}")
        a(f"v_lshl_add_u32 {t[0]}, {g1}, 3, {t[0]}\nv_lshl_add_u32 {t[0]}, {row}, 6, {t[0]}")
        a(f"s_lshl_b32 {self.sTmp}, {self.sTmp2}, 13\ns_add_u32 {self.sTmp}, {self.sTmp}, {EX_PHI}")
        a(f"v_add_u32 {self.vKvA0}, {self.sTmp}, {t[0]}\nv_xor_b32 {self.vKvA1}, 32, {self.vKvA0}\nv_add_u32 {self.vKvA1}, 256, {self.vKvA1}")
        a(f"s_lshl_b32 {self.sTmp}, {self.sTmp2}, 1\nv_add_u32 {t[0]}, {self.sTmp}, {g0}\nv_xor_b32 {t[0]}, {t[0]}, {rs}")
        a(f"v_lshlrev_b32 {t[0]}, 4, {t[0]}\nv_lshl_add_u32 {t[0]}, {g1}, 3, {t[0]}\nv_lshl_add_u32 {t[0]}, {row}, 6, {t[0]}")
        a(f"v_add_u32 {t[0]}, {EX_V}, {t[0]}\nv_xor_b32 {t[1]}, 32, {t[0]}\nv_add_u32 {t[1]}, 256, {t[1]}")
        a(f"v_mov_b32 {t[16]}, {EX_ONES}\nv_cmp_eq_u32 vcc, 0, {j1}\nv_mov_b32 {t[19]}, 1024")
        a(f"v_cndmask_b32 {self.vKvB0}, {t[16]}, {t[0]}, vcc\nv_cndmask_b32 {self.vKvB1}, {t[16]}, {t[1]}, vcc")
        a(f"v_cndmask_b32 {self.vKvStep}, 0, {t[19]}, vcc")
        a(f"v_min_u32 {t[0]}, 16, {tok}\nv_mad_u32_u24 {t[0]}, {hh}, 17, {t[0]}\nv_lshlrev_b32 {self.vKvOff}, 4, {t[0]}")
        a(f"s_lshl_b32 {self.sTmp}, {self.sW}, 12\nv_add_u32 {t[0]}, {self.sTmp}, {self.vL16}")
        a(f"v_add_u32 {self.vRedW}, {S3}, {t[0]}\nv_xor_b32 {self.vRedR}, 8192, {self.vRedW}")
        a(f"v_add_u32 {self.vRedW2}, {S4}, {t[0]}\nv_xor_b32 {self.vRedR2}, 8192, {self.vRedW2}")
        a(f"s_lshl_b32 {self.sTmp}, {self.sW}, 10\ns_add_u32 {self.sTmp}, {self.sTmp}, {EX_KVA}\nv_add_u32 {self.vKvaW}, {self.sTmp}, {self.vL16}")
        a(f"v_bfe_u32 {t[0]}, {tok}, 2, 1\nv_xor_b32 {t[0]}, {t[0]}, {hh}\nv_lshrrev_b32 {t[1]}, 4, {tok}\nv_or_b32 {t[0]}, {t[0]}, {t[1]}")
        a(f"v_bfe_u32 {t[1]}, {tok}, 3, 1\nv_lshl_add_u32 {t[1]}, {t[1]}, 1, {g1}\nv_lshl_add_u32 {t[1]}, {t[0]}, 2, {t[1]}")
        a(f"v_lshlrev_b32 {t[16]}, 4, {g0}\nv_mov_b32 {t[19]}, 0x3f80\nv_lshlrev_b32 {t[16]}, {t[16]}, {t[19]}")
        for q in range(4):
            a(f"v_cmp_eq_u32 vcc, {q}, {t[1]}\nv_cndmask_b32 {t[19]}, 0, {t[16]}, vcc\nv_accvgpr_write_b32 {self.aSel[q]}, {t[19]}")
        vPrep, vPhiA, vSign, vCorW = t[44], t[45], t[46], t[47]
        a(f"v_lshlrev_b32 {t[0]}, 3, {q2}\nv_lshl_add_u32 {t[0]}, {row}, 7, {t[0]}\nv_lshl_add_u32 {t[0]}, {j1}, 13, {t[0]}")
        a(f"s_lshl_b32 {self.sTmp}, {self.sW}, 5\ns_add_u32 {self.sTmp}, {self.sTmp}, {S4}\nv_add_u32 {vPrep}, {self.sTmp}, {t[0]}")
        a(f"v_lshl_add_u32 {t[0]}, {j1}, 1, {g1}\nv_lshlrev_b32 {t[0]}, 3, {t[0]}\nv_lshl_add_u32 {t[0]}, {row}, 5, {t[0]}")
        a(f"s_lshl_b32 {self.sTmp}, {self.sW}, 10\ns_add_u32 {self.sTmp}, {self.sTmp}, {S3 + 4096}\nv_add_u32 {vPhiA}, {self.sTmp}, {t[0]}")
        a(f"v_bfe_u32 {t[0]}, {lane}, 2, 1\nv_mov_b32 {t[1]}, 0x80008000\nv_mul_lo_u32 {vSign}, {t[0]}, {t[1]}")
        a(f"s_lshl_b32 {self.sTmp}, {self.sW}, 2\ns_add_u32 {self.sTmp}, {self.sTmp}, {EX_KVA}\nv_add_u32 {vCorW}, {self.sTmp}, {self.vL16}")
        a(f"s_mov_b32 {self.sPass}, 0\ns_mov_b32 {self.sMode}, 0\ns_mov_b32 {self.sSpin}, 0x40000\ns_mov_b32 {self.sOnes}, 0x3f803f80")
        a(f"s_getreg_b32 {self.sXcc}, hwreg(HW_REG_XCC_ID, 0, 4)\ns_lshl_b32 {self.sFl}, {self.sC}, 7")
        if self.stamps_on:
            a(f"v_mov_b32 {self.vStamp}, 0")
        self.stamp("init")
        a("s_waitcnt lgkmcnt(0)")
        a(f"s_mul_i32 {self.sTok[0]}, {self.sTok[0]}, 0x19660d\ns_add_u32 {self.sTok[0]}, {self.sTok[0]}, 0x3c6ef35f")
        a(f"s_mul_i32 {self.sTok[1]}, {self.sTok[1]}, 0x41c64e6d\ns_add_u32 {self.sTok[1]}, {self.sTok[1]}, {self.sTok[0]}")
        a(f"s_and_b32 {self.sTok[1]}, {self.sTok[1]}, -16")
        a(f"v_mov_b32 {self.vTok[0]}, {self.sTok[0]}\nv_mov_b32 {self.vTok[1]}, {self.sTok[1]}")
        self.set_pub(XA, STA)
        a.wait(vm="res")
        self.tail(None, False)
        self.emit(self.dma_qkv("v", S1))
        self.emit(self.dma_qkv("q", S2))
        a.wait(vm="pub")
        a("s_barrier")

        def sig0():
            a(f"s_lshl_b32 {self.sTmp}, {self.sR}, 3\ns_add_u32 {self.sTmp}, {self.sTmp}, {self.sFl}")
            a(f"s_add_u32 {self.sTmp}, {self.sTmp}, {F_XA}")
            a(f"v_mov_b32 {t[0]}, {self.sTok[0]}\nv_or_b32 {t[1]}, {self.sXcc}, {self.vTok[1]}")
            self.signal(self.rWS, self.sTmp, device=True, data=t[0:2])
        self.wave0(sig0)
        self.stamp("sig0")
        w = self.vW
        for h in range(2):
            for e in range(2):
                a(f"ds_read_b64_tr_b16 {w[4 * h + 2 * e:4 * h + 2 * e + 2]}, {vPhiA} offset:{512 * h + 128 * e}", "phir")
        acc = self.vAcc
        for ks in range(4):
            for e in range(2):
                a(f"ds_read_b64_tr_b16 {acc[4 * ks + 2 * e:4 * ks + 2 * e + 2]}, {vPrep} offset:{2048 * ks + 512 * e}", "prepr")
        a.wait(lg="phir")
        for i in range(8):
            a(f"v_xor_b32 {w[i]}, {vSign}, {w[i]}\nv_accvgpr_write_b32 {self.aPhi[i]}, {w[i]}")
        a.wait(lg="prepr")
        lskip = a.label("L_noprep")
        a(f"s_cmp_ge_u32 s2, 224\ns_cbranch_scc1 {lskip}")
        a.count_ops = False
        a(f"s_lshr_b32 {self.sTmp}, s2, 3\ns_lshl_b32 {self.sTmp}, {self.sTmp}, 2\ns_add_u32 {self.sTmp}, {self.sTmp}, {self.sW}")
        a(f"s_lshl_b32 {self.sTmp}, {self.sTmp}, 3\ns_and_b32 {self.sTmp2}, s2, 7\ns_add_u32 {self.sTmp}, {self.sTmp}, {self.sTmp2}")
        a(f"s_lshl_b32 {self.sOff}, {self.sTmp}, 12\ns_add_u32 {self.sOff}, {self.sOff}, {WGU}")
        for ks in range(4):
            a(f"buffer_store_dwordx4 {acc[4 * ks:4 * ks + 4]}, {self.vL16}, {self.rST}, {self.sOff} offen offset:{1024 * ks} sc1")
        a(f"v_dot2_f32_bf16 {t[0]}, {acc[0]}, {self.sOnes}, 0")
        for i in range(1, 16):
            a(f"v_dot2_f32_bf16 {t[0]}, {acc[i]}, {self.sOnes}, {t[0]}")
        a(f"v_mov_b32 {t[1]}, {t[0]}\nv_permlane32_swap_b32 {t[0]}, {t[1]}\nv_add_f32 {t[0]}, {t[0]}, {t[1]}")
        self.hilo(t[0], t[1])
        a(f"s_lshl_b32 {self.sOff}, {self.sTmp}, 7\ns_add_u32 {self.sOff}, {self.sOff}, {CORRP}")
        a(f"s_mov_b32 exec_hi, 0\nbuffer_store_dword {t[0]}, {self.vL4}, {self.rST}, {self.sOff} offen sc1\ns_mov_b64 exec, -1")
        a(f"s_waitcnt vmcnt(0)")
        a(f"s_lshl_b32 {self.sOff}, {self.sTmp}, 3\ns_add_u32 {self.sOff}, {self.sOff}, {F_PREP}")
        self.signal(self.rST, self.sOff, device=True)
        a.count_ops = True
        a(f"{lskip}:")
        a(f"v_add_u32 {t[2]}, {self.sW8K}, {self.vTrQ0}\nv_add_u32 {t[3]}, {self.sW8K}, {self.vTrQ1}")
        for tau, (nm, slot) in enumerate((("k", S0), ("v", S1), ("q", S2))):
            a.wait(vm="W" + nm)
            base = t[2] if slot < 65536 else t[3]
            for i in range(16):
                a(f"ds_read_b64_tr_b16 {acc[2 * i:2 * i + 2]}, {base} offset:{(slot & 0xFFFF) + 1024 * (i >> 1) + 256 * (i & 1)}", "cs")
            a.wait(lg="cs")
            a(f"v_dot2_f32_bf16 {t[0]}, {acc[0]}, {self.sOnes}, 0")
            for i in range(1, 32):
                a(f"v_dot2_f32_bf16 {t[0]}, {acc[i]}, {self.sOnes}, {t[0]}")
            self.hilo(t[0], t[1])
            a(f"ds_write_b32 {vCorW}, {t[0]} offset:{1024 * tau}", "csw")
        a.wait(lg="csw")

        def poll0():
            a(f"s_add_u32 {self.sOff}, {self.sFl}, {F_XA}")
            self.poll(self.rWS, self.vFlag, self.sOff, first=True)
            a(f"v_and_b32 {t[0]}, 15, {self.vF[1]}\nv_cmp_ne_u32 vcc, {self.sXcc}, {t[0]}")
            a(f"s_cmp_eq_u64 vcc, 0\ns_cselect_b32 {self.sTmp}, 1, 0\nv_mov_b32 {t[0]}, {self.sTmp}\nv_mov_b32 {t[1]}, {EX_KVA + 3072}")
            a(f"ds_write_b32 {t[1]}, {t[0]}\ns_waitcnt lgkmcnt(0)")
        self.wave0(poll0)
        a("s_barrier")
        a(f"v_mov_b32 {t[1]}, {EX_KVA + 3072}\nds_read_b32 {t[0]}, {t[1]}", "mode")
        for tau in range(3):
            r, o = self.lds_base([self.vL16, self.vL16b, self.vL16c], EX_KVA + 1024 * tau)
            a(f"ds_read_b128 {self.aCorrQ[4 * tau:4 * tau + 4]}, {r} offset:{o}", "mode")
        a.wait(lg="mode")
        a(f"v_readfirstlane_b32 {self.sMode}, {t[0]}")
        assert not a.vm and not a.lg, (a.vm, a.lg)

    def hilo(self, x, tmp):
        a = self.a
        a(f"v_cvt_pk_bf16_f32 {tmp}, {x}, {x}\nv_and_b32 {tmp}, 0xffff0000, {tmp}\nv_sub_f32 {tmp}, {x}, {tmp}")
        a(f"v_cvt_pk_bf16_f32 {x}, {x}, {tmp}")

    def kloop(self, tiles, fillers, budget, tr, wait_x=None, wbuf0=0):
        a, w = self.a, self.vW
        seq = [(s, ti) for s in range(32) for ti in range(len(tiles))]
        NB, AHEAD = 8, 6 if not tr else 5
        regs = [self.vTrQ0, self.vTrQ1, self.vTrQ2] if tr else [self.vL16, self.vL16b, self.vL16c]

        def read(i):
            s, ti = seq[i]
            b = w[4 * (i % NB):4 * (i % NB) + 4]
            r, o = self.lds_base(regs, tiles[ti][1] + 1024 * s)
            if tr:
                a(f"ds_read_b64_tr_b16 {b[0:2]}, {r} offset:{o}", ("w", i))
                a(f"ds_read_b64_tr_b16 {b[2:4]}, {r} offset:{o + 256}", ("w", i))
            else:
                a(f"ds_read_b128 {b}, {r} offset:{o}", ("w", i))
        for i in range(AHEAD):
            read(i)
        for i, (s, ti) in enumerate(seq):
            acc = tiles[ti][0]
            if i % 2 == 0:
                a.wait(vm=[(wait_x, seq[i + 1][0])] if wait_x else None, lg=[("w", i + 1)])
            b = w[4 * (i % NB):4 * (i % NB) + 4]
            a(f"{MFMA} {acc}, {b}, {self.aX[4 * s:4 * s + 4]}, {acc if s else 0}")
            if i + AHEAD < len(seq):
                read(i + AHEAD)
            self.fill(fillers, budget)

    def corr(self, acc, c):
        self.a(f"{MFMA} {acc}, {c}, {self.vNM}, {acc}")

    def softmax2(self, p0, p1, out):
        a, t, L = self.a, self.vT, self.vSc[2:4]
        ps = (p0, p1)
        mx = (t[32:34], t[34:36])
        sm = (t[36:38], t[38:40])
        for h, p in enumerate(ps):
            a(f"v_max3_f32 {mx[h][0]}, {p[0]}, {p[1]}, {p[2]}")
            for i in range(3, 15, 2):
                a(f"v_max3_f32 {mx[h][0]}, {mx[h][0]}, {p[i]}, {p[i + 1]}")
            a(f"v_max_f32 {mx[h][0]}, {mx[h][0]}, {p[15]}\nv_mul_f32 {mx[h][0]}, -{mx[h][0]}, {L[0]}")
            for i in range(0, 16, 2):
                a(f"v_pk_fma_f32 {p[i:i + 2]}, {p[i:i + 2]}, {L}, {mx[h]} op_sel_hi:[1,0,0]")
            for i in range(16):
                a(f"v_exp_f32 {p[i]}, {p[i]}")
            a(f"v_pk_add_f32 {sm[h]}, {p[0:2]}, {p[2:4]}")
            for i in range(4, 16, 2):
                a(f"v_pk_add_f32 {sm[h]}, {sm[h]}, {p[i:i + 2]}")
            a(f"v_add_f32 {sm[h][0]}, {sm[h][0]}, {sm[h][1]}\nv_rcp_f32 {sm[h][0]}, {sm[h][0]}")
            for i in range(0, 16, 2):
                a(f"v_pk_mul_f32 {p[i:i + 2]}, {p[i:i + 2]}, {sm[h]} op_sel_hi:[1,0]")
            for i in range(8):
                a(f"v_cvt_pk_bf16_f32 {out[8 * h + i]}, {p[2 * i]}, {p[2 * i + 1]}")
            yield h

    def p1(self):
        a, t, acc, pk, w = self.a, self.vT, self.vAcc, self.vPk, self.vW
        ak, av, p0, p1 = acc[0:16], acc[16:32], acc[32:48], acc[48:64]
        self.stamp("p1")
        a(f"s_lshl_b32 {self.sTmp2}, {self.sRT1}, 15")
        xl = self.load_frags(self.sTmp2, XA, 32, 1024, lambda i: self.aX[4 * i:4 * i + 4], "x")
        self.emit(xl[:10])
        self.emit(self.load_stats(STA))
        self.emit(xl[10:])
        fill = [("STOP", None)] * 24 + self.stats_math(False) + self.dma_wo(0, S4)
        self.kloop([(ak, S0, None), (av, S1, None)], fill, 2, True, wait_x="x")
        self.flush(fill)
        self.corr(ak, self.aCorrQ[0:4])
        self.corr(av, self.aCorrQ[4:8])
        self.stamp("p1kv")
        a(f"v_mov_b32 {t[0]}, {self.sOnes}\nv_mov_b32 {t[1]}, {self.sOnes}\nv_mov_b32 {t[2]}, {EX_ONES}")
        a(f"ds_write_b64 {t[2]}, {t[0:2]}", "ex")
        a(f"v_mov_b32 {t[16]}, {self.vKvB0}\nv_mov_b32 {t[17]}, {self.vKvB1}")
        for i in range(8):
            a(f"v_cvt_pk_bf16_f32 {w[i]}, {ak[2 * i]}, {ak[2 * i + 1]}")
        a(f"{MFMA} {p0}, {self.aPhi[0:4]}, {w[0:4]}, 0\n{MFMA} {p1}, {self.aPhi[4:8]}, {w[4:8]}, 0")
        for i in range(16):
            a(f"v_mul_f32 {av[i]}, {self.vSc[0]}, {av[i]}")
        for i in range(8):
            a(f"v_cvt_pk_bf16_f32 {w[8 + i]}, {av[2 * i]}, {av[2 * i + 1]}")
        a(f"ds_write_b128 {self.vExV0}, {w[8:12]} offset:16384\nds_write_b128 {self.vExV1}, {w[12:16]} offset:16384", "ex")
        for h in self.softmax2(p0, p1, pk):
            a(f"ds_write_b128 {self.vExW0}, {pk[8 * h:8 * h + 4]} offset:{8192 * h}", "ex")
            a(f"ds_write_b128 {self.vExW1}, {pk[8 * h + 4:8 * h + 8]} offset:{8192 * h}", "ex")
        for s in range(1, 8):
            a(f"v_add_u32 {t[16 + 2 * s]}, {t[14 + 2 * s]}, {self.vKvStep}\nv_add_u32 {t[17 + 2 * s]}, {t[15 + 2 * s]}, {self.vKvStep}")
        a.wait(vm="Wq", lg="ex")
        a("s_barrier")
        self.stamp("p1ex")
        lk = a.label("L_nokv")
        a(f"s_cmp_ge_u32 {self.sW}, 2\ns_cbranch_scc1 {lk}")
        vm_keep = list(a.vm)
        for s in range(8):
            fa, fb = (w[4 * s:4 * s + 4], acc[32 + 4 * s:36 + 4 * s])
            a(f"ds_read_b64_tr_b16 {fa[0:2]}, {self.vKvA0} offset:{1024 * s}\nds_read_b64_tr_b16 {fa[2:4]}, {self.vKvA1} offset:{1024 * s}", ("kv", s))
            a(f"ds_read_b64_tr_b16 {fb[0:2]}, {t[16 + 2 * s]}\nds_read_b64_tr_b16 {fb[2:4]}, {t[17 + 2 * s]}", ("kv", s))
            if s >= 2:
                a.wait(lg=("kv", s - 2))
                u = s - 2
                a(f"{MFMA} {ak}, {w[4 * u:4 * u + 4]}, {acc[32 + 4 * u:36 + 4 * u]}, {ak if u else 0}")
        for u in (6, 7):
            a.wait(lg=("kv", u))
            a(f"{MFMA} {ak}, {w[4 * u:4 * u + 4]}, {acc[32 + 4 * u:36 + 4 * u]}, {ak}")
        a(f"s_lshl_b32 {self.sTmp}, {self.sR}, 1\ns_add_u32 {self.sTmp}, {self.sTmp}, {self.sW}\ns_lshl_b32 {self.sTmp}, {self.sTmp}, 5")
        a(f"s_add_u32 {self.sTmp}, {self.sTmp}, {self.sC}\ns_mul_i32 {self.sTmp}, {self.sTmp}, {KVP}\ns_add_u32 {self.sOff}, {self.sTmp}, {KV}")
        a(f"s_add_u32 {self.sTmp2}, {self.sOff}, {16 * KVP}\ns_mov_b32 {self.sEx[0]}, 0x1ffff\ns_mov_b32 {self.sEx[1]}, 0x1ffff")
        for i in range(8):
            a(f"v_cvt_pk_bf16_f32 {av[i]}, {ak[2 * i]}, {ak[2 * i + 1]}")
        a(f"s_mov_b64 exec, {self.sEx}")
        a(f"buffer_store_dwordx4 {av[0:4]}, {self.vKvOff}, {self.rWS}, {self.sOff} offen sc1")
        a(f"buffer_store_dwordx4 {av[4:8]}, {self.vKvOff}, {self.rWS}, {self.sTmp2} offen sc1")
        a(f"s_mov_b64 exec, -1")
        a.vm = vm_keep
        a(f"{lk}:")
        self.stamp("p1st")

        def kvsig():
            l = a.label("L_nosig")
            a(f"s_cmp_ge_u32 {self.sW}, 2\ns_cbranch_scc1 {l}")
            a.count_ops = False
            a("s_waitcnt vmcnt(0)")
            a(f"s_lshl_b32 {self.sTmp}, {self.sR}, 1\ns_add_u32 {self.sTmp}, {self.sTmp}, {self.sW}\ns_lshl_b32 {self.sTmp}, {self.sTmp}, 4")
            a(f"s_add_u32 {self.sTmp}, {self.sTmp}, {self.sC}\ns_lshl_b32 {self.sTmp}, {self.sTmp}, 3\ns_add_u32 {self.sTmp}, {self.sTmp}, {F_KV}")
            self.signal(self.rWS, self.sTmp, device=True)
            a.count_ops = True
            a(f"{l}:")

        def prep_wait():
            l = a.label("L_noprepw")
            a(f"s_cmp_lg_u32 {self.sPass}, 0\ns_cbranch_scc1 {l}")
            a.count_ops = False
            a(f"v_lshrrev_b32 {t[40]}, 1, {self.vL16}\nv_min_u32 {t[40]}, {55 * 8}, {t[40]}")
            a(f"s_mul_i32 {self.sOff}, {self.sR}, {7 * 64}\ns_add_u32 {self.sOff}, {self.sOff}, {F_PREP}")
            self.poll(self.rST, t[40], self.sOff)
            a(f"v_and_b32 {t[40]}, 124, {self.vL4}\nv_and_b32 {t[41]}, 512, {self.vL16}\nv_add_u32 {t[40]}, {t[40]}, {t[41]}")
            a(f"s_mul_i32 {self.sOff}, {self.sR}, {7 * 1024}\ns_add_u32 {self.sOff}, {self.sOff}, {CORRP}")
            for tt in range(7):
                if tt == 4:
                    a(f"s_add_u32 {self.sOff}, {self.sOff}, 4096")
                for q in range(4):
                    a(f"buffer_load_dword {self.aCorrG[4 * tt + q]}, {t[40]}, {self.rST}, {self.sOff} offen offset:{1024 * (tt % 4) + 128 * q} sc1")
            a.count_ops = True
            a(f"{l}:")
        fill = [("STOP", None)] * 24 + [(kvsig, None)]
        self.kloop([(ak, S2, None)], fill, 2, True)
        self.flush(fill)
        self.corr(ak, self.aCorrQ[8:12])
        prep_wait()
        self.emit(self.dma_wo(1, S0))
        self.emit(self.dma_gu(0, S1))
        for i in range(8):
            a(f"v_cvt_pk_bf16_f32 {w[i]}, {ak[2 * i]}, {ak[2 * i + 1]}")
        a(f"{MFMA} {p0}, {self.aPhi[0:4]}, {w[0:4]}, 0\n{MFMA} {p1}, {self.aPhi[4:8]}, {w[4:8]}, 0")
        for h in self.softmax2(p0, p1, pk):
            pass
        self.stamp("p1q")
        a(f"s_lshr_b32 {self.sTmp}, {self.sW}, 1\ns_lshl_b32 {self.sOff}, {self.sR}, 1\ns_add_u32 {self.sOff}, {self.sOff}, {self.sTmp}")
        a(f"s_lshl_b32 {self.sOff}, {self.sOff}, 7\ns_add_u32 {self.sOff}, {self.sOff}, {F_KV}")
        self.poll(self.rWS, self.vFlag, self.sOff)
        self.stamp("p1poll")
        a(f"s_lshl_b32 {self.sTmp}, {self.sR}, 2\ns_add_u32 {self.sTmp}, {self.sTmp}, {self.sW}\ns_mul_i32 {self.sTmp}, {self.sTmp}, {16 * KVP}")
        for p in range(16):
            if p % 6 == 0:
                a(f"s_add_u32 {self.sOff}, {self.sTmp}, {KV + p * KVP}")
            a(f"buffer_load_dwordx4 {self.aX[4 * p:4 * p + 4]}, {self.vKvOff}, {self.rWS}, {self.sOff} offen offset:{(p % 6) * KVP} sc1", ("kp", p))
        for p in range(16):
            if p % 2 == 0:
                a.wait(vm=("kp", p + 1))
            a(f"{MFMA} {ak}, {self.aSel}, {self.aX[4 * p:4 * p + 4]}, {ak if p else 0}")
        for i in range(4):
            a(f"v_cvt_pk_bf16_f32 {w[i]}, {ak[2 * i]}, {ak[2 * i + 1]}")
        a(f"ds_write_b128 {self.vKvaW}, {w[0:4]}", "kva")
        a.wait(lg="kva")
        a("s_barrier")
        for i in range(4):
            r, o = self.lds_base([self.vL16, self.vL16b, self.vL16c], EX_KVA + 1024 * i)
            a(f"ds_read_b128 {w[4 * i:4 * i + 4]}, {r} offset:{o}", ("kva", i))
        a(f"s_lshl_b32 {self.sOff}, {self.sRT1}, 15\ns_lshl_b32 {self.sTmp}, {self.sR}, 11\ns_add_u32 {self.sOff}, {self.sOff}, {self.sTmp}")
        a(f"s_add_u32 {self.sOff}, {self.sOff}, {OO}")
        for h, p in enumerate((p0, p1)):
            a.wait(lg=("kva", 2 * h + 1))
            a(f"{MFMA} {p}, {w[8 * h:8 * h + 4]}, {pk[8 * h:8 * h + 4]}, 0")
            a(f"{MFMA} {p}, {w[8 * h + 4:8 * h + 8]}, {pk[8 * h + 4:8 * h + 8]}, {p}")
        for h, p in enumerate((p0, p1)):
            a(f"v_add_f32 {p[8]}, {f32(1e-6)}, {p[8]}\nv_rcp_f32 {p[8]}, {p[8]}")
            for i in range(0, 8, 2):
                a(f"v_pk_mul_f32 {p[i:i + 2]}, {p[i:i + 2]}, {p[8:10]} op_sel_hi:[1,0]")
            for i in range(4):
                a(f"v_cvt_pk_bf16_f32 {av[4 * h + i]}, {p[2 * i]}, {p[2 * i + 1]}")
        self.hstore([f"buffer_store_dwordx4 {av[0:4]}, {self.vL16}, {self.rWS}, {self.sOff} offen",
                     f"buffer_store_dwordx4 {av[4:8]}, {self.vL16}, {self.rWS}, {self.sOff} offen offset:1024"], "pub")
        self.stamp("p1o")
        self.cluster_sync(F_O, ["pub"])

    def nphase(self, slots, frag, loads, window, after, redw, redr):
        a, w = self.a, self.vW
        keep, send = self.vResid, self.vAcc[0:16]
        n = 8 * len(slots)
        AHEAD = 3
        q = []

        def read(i):
            base = slots[i // 8] + 4096 * (i % 8)
            for k, regs in enumerate((self.vKeep, self.vSend)):
                b = w[8 * (i % 4) + 4 * k:8 * (i % 4) + 4 * k + 4]
                r, o = self.lds_base([regs[0], regs[1], regs[2]], base)
                a(f"ds_read_b64_tr_b16 {b[0:2]}, {r} offset:{o}\nds_read_b64_tr_b16 {b[2:4]}, {r} offset:{o + 512}", ("w", i))
        for i in range(AHEAD):
            read(i)
        for i in range(n):
            a.wait(vm=[("act", i)], lg=[("w", i)])
            if i % 8 == 7 and i // 8 in after:
                tags, dma = after[i // 8]
                self.flush(q)
                a.wait(vm=list(tags))
                a("s_barrier")
                q += dma
            b = w[8 * (i % 4):8 * (i % 4) + 8]
            a(f"{MFMA} {keep}, {b[0:4]}, {frag(i)}, {keep}")
            if i + window < n:
                self.emit(loads[i + window])
            self.fill(q, 2)
            a(f"{MFMA} {send}, {b[4:8]}, {frag(i)}, {send if i else 0}")
            if i + AHEAD < n:
                read(i + AHEAD)
        self.flush(q)
        for i in range(4):
            a(f"ds_write_b128 {redw}, {send[4 * i:4 * i + 4]} offset:{1024 * i}", "red")
        a.wait(lg="red")
        a("s_barrier")
        for i in range(4):
            a(f"ds_read_b128 {send[4 * i:4 * i + 4]}, {redr} offset:{1024 * i}", ("red", i))
        for i in range(4):
            a.wait(lg=("red", i))
            for j in (0, 2):
                a(f"v_pk_add_f32 {keep[4 * i + j:4 * i + j + 2]}, {keep[4 * i + j:4 * i + j + 2]}, {send[4 * i + j:4 * i + j + 2]}")

    def p2(self):
        a = self.a
        self.stamp("p2")
        a(f"s_lshl_b32 {self.sTmp2}, {self.sRT2}, 15\ns_lshr_b32 {self.sTmp}, {self.sW}, 1\ns_lshl_b32 {self.sTmp}, {self.sTmp}, 14")
        a(f"s_add_u32 {self.sTmp2}, {self.sTmp2}, {self.sTmp}")
        frag = lambda i: self.aX[4 * i:4 * i + 4]
        self.emit(self.load_frags(self.sTmp2, OO, 16, 1024, frag, "act"))
        self.emit(self.dma_gu(1, S2))
        self.emit(self.dma_gu(2, S3))
        self.set_pub(XB, STB)
        self.nphase([S4, S0], frag, None, 16, {0: ((), [])}, self.vRedW2, self.vRedR2)
        self.stamp("p2k")
        self.tail(self.vResid, False)
        self.stamp("p2t")
        self.cluster_sync(F_XB, ["pub"])

    def p4(self):
        a = self.a
        self.stamp("p4")
        NBUF, WIN = 40, 36
        a(f"s_mul_i32 {self.sTmp2}, {self.sRT2}, {112 * 1024}\ns_lshr_b32 {self.sTmp}, {self.sW}, 1\ns_mul_i32 {self.sTmp}, {self.sTmp}, {56 * 1024}")
        a(f"s_add_u32 {self.sTmp2}, {self.sTmp2}, {self.sTmp}")
        frag = lambda i: self.aX[4 * (i % NBUF):4 * (i % NBUF) + 4]
        loads = []
        for i in range(56):
            t, st = divmod(i, 8)
            loads.append([(f"s_add_u32 {self.sOff}, {self.sTmp2}, {HH + (7 * st + t) * 1024}", None),
                          (f"buffer_load_dwordx4 {frag(i)}, {self.vL16}, {self.rWS}, {self.sOff} offen sc1", ("act", i))])
        for i in range(WIN):
            self.emit(loads[i])
        self.set_pub(PASS + XA, PASS + STA)
        after = {0: ((), self.dma_wd(5, S3)), 1: ((), self.dma_wd(6, S4)), 3: (("d5",), self.dma_qkv("k", S0)),
                 4: (("d6",), self.dma_qkv("v", S1)), 5: ((), self.dma_qkv("q", S2))}
        self.nphase([S3, S4, S0, S1, S2, S3, S4], frag, loads, WIN, after, self.vRedW, self.vRedR)
        self.stamp("p4k")
        self.tail(self.vResid, True)
        self.stamp("p4t")
        self.cluster_sync(PASS + F_XA, ["pub"])

    def gelu(self, acc, tt):
        t, sc = self.vT, self.vSc
        K0, K1, S2i = sc[2], sc[4], sc[6]
        out = t[24 + 4 * (tt % 2):28 + 4 * (tt % 2)]
        o = []
        for i0 in range(0, 8, 4):
            ix = range(i0, i0 + 4)
            tm = {i: t[16 + i] for i in ix}
            o += [f"v_mul_f32 {tm[i]}, {acc[i]}, {acc[i]}" for i in ix]
            o += [f"v_fma_f32 {tm[i]}, {tm[i]}, {K1}, {K0}" for i in ix]
            o += [f"v_mul_f32 {tm[i]}, {tm[i]}, {acc[i]}" for i in ix]
            for i in ix:
                o += [f"v_exp_f32 {tm[i]}, {tm[i]}", f"v_mul_f32 {acc[i]}, {acc[i]}, {acc[8 + i]}"]
            o += [f"v_fma_f32 {tm[i]}, {tm[i]}, {S2i}, {S2i}" for i in ix]
            o += [f"v_rcp_f32 {tm[i]}, {tm[i]}" for i in ix]
            o += [f"v_mul_f32 {acc[i]}, {acc[i]}, {tm[i]}" for i in ix]
            o += [f"v_cvt_pk_bf16_f32 {out[i // 2]}, {acc[i]}, {acc[i + 1]}" for i in range(i0, i0 + 4, 2)]
        o = [(x, None) for x in o]
        off = f" offset:{1024 * (tt % 4)}" if tt % 4 else ""
        so = self.sXo if tt < 4 else self.sSo
        o.append((lambda: self.hstore([f"buffer_store_dwordx4 {out}, {self.vL16}, {self.rWS}, {so} offen{off}"], "pub"), None))
        return o

    def p3(self):
        a, acc = self.a, self.vAcc
        self.stamp("p3")
        a(f"s_lshl_b32 {self.sTmp2}, {self.sRT1}, 15")
        xl = self.load_frags(self.sTmp2, XB, 32, 1024, lambda i: self.aX[4 * i:4 * i + 4], "x")
        self.emit(xl[:10])
        self.emit(self.load_stats(STB))
        self.emit(xl[10:])
        a(f"s_mul_i32 {self.sXo}, {self.sRT1}, {112 * 1024}\ns_mul_i32 {self.sTmp}, {self.sR}, {7 * 1024}")
        a(f"s_add_u32 {self.sXo}, {self.sXo}, {self.sTmp}\ns_add_u32 {self.sXo}, {self.sXo}, {HH}\ns_add_u32 {self.sSo}, {self.sXo}, 4096")
        A = [acc[16 * i:16 * i + 16] for i in range(4)]
        slot = [S1, S2, S3, S4, S0, S1, S2]
        C = lambda tt: self.aCorrG[4 * tt:4 * tt + 4]
        fill = [("STOP", None)] * 20 + self.dma_gu(3, S4) + self.stats_math(True) + self.dma_gu(4, S0)
        self.kloop([(A[0], slot[0], None), (A[1], slot[1], None)], fill, 3, False, wait_x="x")
        self.flush(fill)
        self.corr(A[0], C(0))
        self.corr(A[1], C(1))
        self.stamp("p3a")
        nxt = {2: self.dma_gu(5, S1) + self.dma_gu(6, S2), 3: self.dma_wd(0, S3), 4: self.dma_wd(1, S4),
               5: self.dma_wd(2, S0), 6: self.dma_wd(3, S1)}
        epi = self.gelu(A[0], 0) + self.gelu(A[1], 1)
        for tt in range(2, 7):
            a.wait(vm=f"t{tt}")
            a("s_barrier")
            fill = nxt[tt] + epi
            self.kloop([(A[tt % 4], slot[tt], None)], fill, 4, False)
            self.corr(A[tt % 4], C(tt))
            assert len(fill) < 75, (tt, len(fill))
            epi = fill + self.gelu(A[tt % 4], tt)
        self.stamp("p3k")
        a("s_barrier")
        self.emit(self.dma_wd(4, S2))
        self.flush(epi)
        self.stamp("p3t")
        self.cluster_sync(F_H, ["pub"])

    def build(self):
        a = self.a
        self.init()
        a("L_pass:")
        a.vm = ["Wq"]
        self.p1()
        self.p2()
        self.p3()
        self.p4()
        assert not a.vm and not a.lg, (a.vm, a.lg)
        a(f"s_add_u32 {self.rWS[0]}, {self.rWS[0]}, {PASS}\ns_addc_u32 {self.rWS[1]}, {self.rWS[1]}, 0")
        a(f"s_mov_b32 {self.sPass}, 1\ns_branch L_pass")
        a("L_final:")
        a(f"buffer_store_dwordx4 {self.vPk[0:4]}, {self.vRes}, {self.rOUT}, {self.sFo} offen")
        a(f"buffer_store_dwordx4 {self.vPk[4:8]}, {self.vRes}, {self.rOUT}, {self.sFo} offen offset:32")
        a(f"s_or_b32 {self.sTmp}, s2, {self.sW}\ns_cmp_lg_u32 {self.sTmp}, 0\ns_cbranch_scc1 L_done")
        a(f"s_mov_b64 exec, 1\nbuffer_store_dwordx2 {self.vTok}, off, {self.rST}, 0 offset:{EPOCH}\ns_mov_b64 exec, -1")
        a("L_done:")
        if self.stamps_on:
            a("s_waitcnt vmcnt(0)")
            self.stamp("end")
            a(f"s_lshl_b32 {self.sTmp}, s2, 2\ns_add_u32 {self.sTmp}, {self.sTmp}, {self.sW}\ns_lshl_b32 {self.sTmp}, {self.sTmp}, 8")
            a(f"s_add_u32 {self.sTmp}, {self.sTmp}, {STAMPS}")
            a(f"buffer_store_dword {self.vStamp}, {self.vL4}, {self.rST}, {self.sTmp} offen")
        a("s_waitcnt vmcnt(0)\ns_endpgm\nL_code_end:")
        a.fix_hazards()
        ref = open(f"cdna_kernels/{NAME}.s.ref").read().split("\n")
        head = [l for l in ref if l.startswith(";") and "@launch" not in l]
        head.append("; @launch grid=(256,1,1) block=(256,1,1) lds=163840")
        k = NAME + "_kernel"
        src = "\n".join(head) + f"""
.amdgcn_target "amdgcn-amd-amdhsa--gfx950"
.text
.globl {k}
.p2align 8
.type {k},@function
{k}:
{a.text()}
.section .rodata,"a"
.p2align 6
.amdhsa_kernel {k}
  .amdhsa_next_free_vgpr 512
  .amdhsa_next_free_sgpr 102
  .amdhsa_accum_offset 256
  .amdhsa_group_segment_fixed_size 0
  .amdhsa_kernarg_size 88
  .amdhsa_user_sgpr_count 2
  .amdhsa_user_sgpr_kernarg_segment_ptr 1
  .amdhsa_system_sgpr_workgroup_id_x 1
.end_amdhsa_kernel
"""
        return src


if __name__ == "__main__":
    out = sys.argv[1] if len(sys.argv) > 1 else "k.s"
    opts = sys.argv[2:]
    g = Gen(stamps="stamps" in opts, local="nolocal" not in opts)
    open(out, "w").write(g.build())
    if g.stamps_on:
        open(out[:-2] + ".names", "w").write("\n".join(g.stamp_names))
    print("vgpr", g.V.high, "agpr", g.A.high, "sgpr", g.S.high, "instrs", len(g.a.ins))
```
